```python
import torch

def _softmax(x, axis=-1):
    return torch.softmax(x, dim=axis)
def _gelu(x):
    return torch.nn.functional.gelu(x, approximate="tanh")
def _silu(x):
    return torch.nn.functional.silu(x)
def _sigmoid(x):
    return torch.sigmoid(x)
def _layernorm(x, axis=-1, eps=1e-5):
    m = x.mean(dim=axis, keepdim=True)
    v = x.var(dim=axis, keepdim=True, unbiased=False)
    return (x - m) / torch.sqrt(v + eps)
def _scatter_add(tgt, idx, src, axis=0):
    return tgt.clone().index_add_(axis, idx, src)
def _segment_sum(src, seg, n):
    out = torch.zeros((n,) + src.shape[1:], dtype=src.dtype)
    return out.index_add_(0, seg, src)
def _pad(x, pw):
    flat = tuple(v for pair in reversed(pw) for v in pair)
    return torch.nn.functional.pad(x, flat)

kernel_name = 'standalone__kernel_systems_refs_featgraph__graph'

def setup_inputs():

    _w = (lambda a: (lambda t: t.to(torch.bfloat16) if t.is_floating_point() else t)(torch.as_tensor(a)))
    N, deg, D = 50000, 16, 64
    E = N * deg
    scale = D ** -0.5
    src = (lambda lo, hi, *s: torch.randint(lo, hi, s))(0, N, E).to(torch.int64)
    dst = (lambda lo, hi, *s: torch.randint(lo, hi, s))(0, N, E).to(torch.int64)
    return {
        "x": _w((lambda *s: torch.randn(*s, dtype=torch.bfloat16) * 0.8)(N, D)),
        "src": _w(src),
        "dst": _w(dst),
        "w_q": _w((lambda *s: torch.randn(*s, dtype=torch.bfloat16) * 0.8)(D, D) * scale),
        "w_v": _w((lambda *s: torch.randn(*s, dtype=torch.bfloat16) * 0.05)(D, D) * scale),
    }

def reference(x, src, dst, w_q, w_v):
    N, D = x.shape
    xs = x[src]
    xd = x[dst]
    q = xd @ w_q
    logits = torch.einsum('ed,ed->e', xs, q) * (float(D) ** -0.5)
    alpha = _sigmoid(logits)
    msg = alpha[:, None] * (xs @ w_v)
    return _segment_sum(msg, dst, N)
```

```python
K='standalone__kernel_systems_refs_featgraph__graph'
o=[]
A=o.append
A(f"; @launch kernel=sort_kernel grid=(256,1,1) block=(256,1,1) lds=16384")
A(f"; @launch kernel={K}_kernel grid=(256,1,1) block=(1024,1,1) lds=116736")
A('.amdgcn_target "amdgcn-amd-amdhsa--gfx950"\n.text')
def srd(d,b,n): A(f"s_mov_b32 s{d}, s{b}\ns_mov_b32 s{d+1}, s{b+1}\ns_mov_b32 s{d+2}, {n}\ns_mov_b32 s{d+3}, 0x20000")
TAB=4<<20
A(".globl sort_kernel\n.p2align 8\n.type sort_kernel,@function\nsort_kernel:")
A("s_cmp_ge_u32 s2, 256\ns_cbranch_scc1 L1end")
A("s_load_dwordx4 s[4:7], s[0:1], 8\ns_load_dwordx2 s[8:9], s[0:1], 56\ns_waitcnt lgkmcnt(0)")
srd(12,4,3200000); srd(16,6,3200000); srd(20,8,TAB+262144)
[A(f"s_mov_b32 s{40+k}, {k*1024}") for k in range(13)]
A("""s_mul_i32 s24, s2, 12500
s_mov_b32 s25, 21913099
s_mov_b32 s26, 196
v_lshlrev_b32 v1, 2, v0
v_mov_b32 v2, 0
ds_write_b32 v1, v2
v_add_u32 v3, s24, v1""")
for k in range(13):
    if k==12: A("v_cmp_gt_u32 vcc, 53, v0\ns_and_saveexec_b64 s[28:29], vcc")
    A(f"buffer_load_dword v{10+k}, v3, s[12:15], s{40+k} offen")
    A(f"buffer_load_dword v{30+k}, v3, s[16:19], s{40+k} offen")
A("s_mov_b64 exec, s[28:29]\ns_waitcnt vmcnt(0) lgkmcnt(0)\ns_barrier\nv_mov_b32 v2, 1")
for k in range(13):
    if k==12: A("s_mov_b64 exec, vcc")
    A(f"""v_mul_hi_u32 v{50+k}, v{30+k}, s25
v_mul_lo_u32 v4, v{50+k}, s26
v_sub_u32 v4, v{30+k}, v4
v_lshl_or_b32 v{10+k}, v4, 16, v{10+k}
v_lshlrev_b32 v{50+k}, 2, v{50+k}
ds_add_rtn_u32 v{30+k}, v{50+k}, v2""")
A("s_mov_b64 exec, s[28:29]\ns_waitcnt lgkmcnt(0)\ns_barrier\nds_read_b32 v5, v1\ns_waitcnt lgkmcnt(0)\nv_mov_b32 v6, v5")
for d in (1,2,4,8,16,32,64,128):
    A(f"""s_barrier
ds_write_b32 v1, v6
s_waitcnt lgkmcnt(0)
s_barrier
v_subrev_u32 v7, {d*4}, v1
v_max_i32 v7, 0, v7
ds_read_b32 v7, v7
v_cmp_le_u32 vcc, {d}, v0
s_waitcnt lgkmcnt(0)
v_cndmask_b32 v7, 0, v7, vcc
v_add_u32 v6, v6, v7""")
A(f"""v_sub_u32 v6, v6, v5
s_barrier
ds_write_b32 v1, v6
v_lshl_or_b32 v7, v5, 16, v6
s_lshl_b32 s27, s2, 2
s_add_u32 s27, s27, {TAB}
v_lshlrev_b32 v8, 10, v0
buffer_store_dword v7, v8, s[20:23], s27 offen
s_waitcnt lgkmcnt(0)
s_barrier
v_cmp_gt_u32 vcc, 53, v0""")
for k in range(13):
    if k==12: A("s_mov_b64 exec, vcc")
    A(f"ds_read_b32 v{50+k}, v{50+k}")
A("s_waitcnt lgkmcnt(0)")
for k in range(13):
    if k==12: A("s_mov_b64 exec, vcc")
    else: A("s_mov_b64 exec, s[28:29]")
    A(f"v_add_u32 v4, v{50+k}, v{30+k}\nv_lshlrev_b32 v4, 2, v4\nds_write_b32 v4, v{10+k} offset:1024")
A("s_mov_b64 exec, s[28:29]\ns_waitcnt lgkmcnt(0)\ns_barrier")
for k in range(13):
    if k==12: A("s_mov_b64 exec, vcc")
    A(f"ds_read_b32 v{10+k}, v1 offset:{1024+k*1024}")
A("s_waitcnt lgkmcnt(0)")
for k in range(13):
    if k==12: A("s_mov_b64 exec, vcc")
    else: A("s_mov_b64 exec, s[28:29]")
    A(f"buffer_store_dword v{10+k}, v3, s[20:23], s{40+k} offen")
A("L1end:\ns_endpgm")
ACC,Q,ED,PRE=63488,36864,4096,0
A(f".globl {K}_kernel\n.p2align 8\n.type {K}_kernel,@function\n{K}_kernel:")
A("s_cmp_ge_u32 s2, 256\ns_cbranch_scc1 L2end")
A("s_load_dwordx2 s[4:5], s[0:1], 0\ns_load_dwordx4 s[8:11], s[0:1], 24\ns_load_dwordx2 s[12:13], s[0:1], 40\ns_load_dwordx2 s[14:15], s[0:1], 56\ns_waitcnt lgkmcnt(0)")
srd(16,4,6400000); srd(20,8,8192); srd(24,10,8192); srd(28,12,6400000); srd(32,14,TAB+262144)
A(f"""v_and_b32 v1, 63, v0
v_lshrrev_b32 v2, 6, v0
s_nop 0
v_readfirstlane_b32 s36, v2
s_mul_i32 s37, s2, {196*128}
v_lshlrev_b32 v3, 4, v0
v_add_u32 v3, {ACC}, v3
v_mov_b32 v4, 0
v_mov_b32 v5, 0
v_mov_b32 v6, 0
v_mov_b32 v7, 0""")
for k in range(4):
    if k==3: A(f"v_cmp_gt_u32 vcc, {(53248-49152)//16}, v0\ns_and_saveexec_b64 s[38:39], vcc")
    A(f"ds_write_b128 v3, v[4:7] offset:{k*16384}")
A("s_mov_b64 exec, s[38:39]")
A(f"""v_cmp_gt_u32 vcc, 256, v0
s_and_saveexec_b64 s[38:39], vcc
s_lshl_b32 s40, s2, 10
s_add_u32 s40, s40, {TAB}
v_lshlrev_b32 v8, 2, v0
buffer_load_dword v9, v8, s[32:35], s40 offen
s_waitcnt vmcnt(0)
v_lshrrev_b32 v10, 16, v9
v_mov_b32 v11, v10
s_mov_b64 exec, s[38:39]""")
for d in (1,2,4,8,16,32,64,128):
    A(f"""s_and_saveexec_b64 s[38:39], vcc
ds_write_b32 v8, v11 offset:{PRE+4}
s_mov_b64 exec, s[38:39]
s_waitcnt lgkmcnt(0)
s_barrier
s_and_saveexec_b64 s[38:39], vcc
v_subrev_u32 v12, {d*4}, v8
v_max_i32 v12, 0, v12
ds_read_b32 v12, v12 offset:{PRE+4}
v_mov_b32 v33, {d}\nv_cmp_le_u32 s[42:43], v33, v0\ns_nop 1
s_waitcnt lgkmcnt(0)
v_cndmask_b32 v12, 0, v12, s[42:43]
v_add_u32 v11, v11, v12
s_mov_b64 exec, s[38:39]
s_barrier""")
A(f"""s_and_saveexec_b64 s[38:39], vcc
ds_write_b32 v8, v11 offset:{PRE+4}
ds_write_b32 v8, v9 offset:{PRE+2048}
s_mov_b64 exec, s[38:39]
v_mov_b32 v12, 0
ds_write_b32 v12, v12 offset:{PRE}
v_and_b32 v13, 15, v1
v_lshrrev_b32 v14, 4, v1
v_lshlrev_b32 v15, 1, v13
v_lshl_add_u32 v15, v14, 10, v15
v_add_u32 v19, 0x1000, v15
s_cmp_ge_u32 s36, 13
s_cbranch_scc1 LQskip""")
def loadB(S):
    for ct in range(4):
        for ks in range(2):
            for j in range(8):
                A(f"buffer_load_ushort v{80+j}, v{15 if ks==0 else 19}, s[{S}:{S+3}], 0 offen offset:{j*128+ct*32}")
            A("s_waitcnt vmcnt(0)")
            for j in range(4):
                A(f"v_lshl_or_b32 v{40+(ct*2+ks)*4+j}, v{81+2*j}, 16, v{80+2*j}")
loadB(20)
A(f"""s_lshl_b32 s40, s36, 11
s_add_u32 s40, s40, s37
v_lshlrev_b32 v16, 7, v13
v_lshl_add_u32 v16, v14, 4, v16
buffer_load_dwordx4 v[72:75], v16, s[16:19], s40 offen
buffer_load_dwordx4 v[76:79], v16, s[16:19], s40 offen offset:64
s_waitcnt vmcnt(0)
s_lshl_b32 s40, s36, 11
v_lshlrev_b32 v17, 9, v14
v_lshl_add_u32 v17, v13, 1, v17
v_add_u32 v17, s40, v17""")
for ct in range(4):
    A(f"""v_mfma_f32_16x16x32_bf16 v[84:87], v[72:75], v[{40+ct*8}:{43+ct*8}], 0
v_mfma_f32_16x16x32_bf16 v[84:87], v[76:79], v[{44+ct*8}:{47+ct*8}], v[84:87]
s_nop 7
v_cvt_pk_bf16_f32 v84, v84, v85
v_cvt_pk_bf16_f32 v86, v86, v87
ds_write_b16 v17, v84 offset:{Q+ct*32}
ds_write_b16_d16_hi v17, v84 offset:{Q+ct*32+128}
ds_write_b16 v17, v86 offset:{Q+ct*32+256}
ds_write_b16_d16_hi v17, v86 offset:{Q+ct*32+384}""")
A(f"""LQskip:
s_waitcnt lgkmcnt(0)
s_barrier
v_mov_b32 v20, {PRE+1024}
ds_read_b32 v20, v20
v_lshrrev_b32 v21, 2, v0
v_lshlrev_b32 v21, 2, v21
ds_read_b32 v22, v21 offset:{PRE}
ds_read_b32 v23, v21 offset:{PRE+4}
ds_read_b32 v24, v21 offset:{PRE+2048}
s_waitcnt lgkmcnt(0)
v_readfirstlane_b32 s44, v20
s_mov_b32 s45, 0
v_and_b32 v24, 0xffff, v24
v_mul_u32_u24 v25, 3125, v21
v_sub_u32 v24, v24, v22
v_lshl_add_u32 v24, v24, 2, v25
v_and_b32 v26, 3, v0
v_add_u32 v26, v26, v22
v_lshrrev_b32 v27, 3, v1
v_and_b32 v28, 7, v1
v_lshlrev_b32 v28, 4, v28
v_lshl_add_u32 v27, s36, 3, v27
s_mov_b32 s48, 0x3e38aa3b
LROUND:
s_cmp_ge_u32 s45, s44
s_cbranch_scc1 LEPI
s_add_u32 s46, s45, 8192
v_min_u32 v29, s46, v23
LCOPY:
v_cmp_lt_u32 vcc, v26, v29
s_and_saveexec_b64 s[38:39], vcc
s_cbranch_execz LCDONE
v_lshl_add_u32 v30, v26, 2, v24
buffer_load_dword v31, v30, s[32:35], 0 offen
v_subrev_u32 v32, s45, v26
v_lshlrev_b32 v32, 2, v32
v_add_u32 v26, 4, v26
s_waitcnt vmcnt(0)
ds_write_b32 v32, v31 offset:{ED}
s_mov_b64 exec, s[38:39]
s_branch LCOPY
LCDONE:
s_mov_b64 exec, s[38:39]
s_waitcnt lgkmcnt(0)
s_barrier
s_min_u32 s47, s46, s44
s_sub_u32 s47, s47, s45
s_mov_b32 s49, 0
LMAIN:
s_cmp_ge_u32 s49, s47
s_cbranch_scc1 LMDONE""")
U=4
for u in range(U):
    A(f"""v_add_u32 v{100+u}, {128*u}, v27
v_add_u32 v{100+u}, s49, v{100+u}
v_cmp_gt_u32 s[{50+2*u}:{51+2*u}], s47, v{100+u}
v_lshlrev_b32 v{100+u}, 2, v{100+u}
ds_read_b32 v{100+u}, v{100+u} offset:{ED}""")
A("s_waitcnt lgkmcnt(0)")
for u in range(U):
    A(f"""v_cndmask_b32 v{100+u}, 0, v{100+u}, s[{50+2*u}:{51+2*u}]
v_and_b32 v{104+u}, 0xffff, v{100+u}
v_lshl_add_u32 v{104+u}, v{104+u}, 7, v28
buffer_load_dwordx4 v[{40+4*u}:{43+4*u}], v{104+u}, s[16:19], 0 offen
v_lshrrev_b32 v{100+u}, 16, v{100+u}
v_lshl_add_u32 v{108+u}, v{100+u}, 7, v28
ds_read_b128 v[{60+4*u}:{63+4*u}], v{108+u} offset:{Q}""")
for u in range(U):
    x=40+4*u;q=60+4*u;z=112+u
    A(f"s_waitcnt vmcnt({U-1-u}) lgkmcnt({U-1-u})\nv_mov_b32 v{z}, 0")
    for j in range(4): A(f"v_dot2_f32_bf16 v{z}, v{x+j}, v{q+j}, v{z}")
    A(f"""s_nop 3
v_add_f32_dpp v{z}, v{z}, v{z} quad_perm:[1,0,3,2] row_mask:0xf bank_mask:0xf
s_nop 1
v_add_f32_dpp v{z}, v{z}, v{z} quad_perm:[2,3,0,1] row_mask:0xf bank_mask:0xf
s_nop 1
v_add_f32_dpp v{z}, v{z}, v{z} row_half_mirror row_mask:0xf bank_mask:0xf
v_mul_f32 v{z}, s48, v{z}
v_sub_f32 v{z}, 0, v{z}
v_exp_f32 v{z}, v{z}
s_nop 0
v_add_f32 v{z}, 1.0, v{z}
v_rcp_f32 v{z}, v{z}
s_nop 0
v_cndmask_b32 v{z}, 0, v{z}, s[{50+2*u}:{51+2*u}]
v_lshlrev_b32 v{108+u}, 1, v{108+u}
v_add_u32 v{108+u}, {ACC}, v{108+u}""")
    for j in range(4):
        A(f"""v_lshlrev_b32 v116, 16, v{x+j}
v_and_b32 v117, 0xffff0000, v{x+j}
v_mul_f32 v116, v116, v{z}
v_mul_f32 v117, v117, v{z}
ds_add_f32 v{108+u}, v116 offset:{j*8}
ds_add_f32 v{108+u}, v117 offset:{j*8+4}""")
A(f"""s_add_u32 s49, s49, {128*U}
s_branch LMAIN
LMDONE:
s_waitcnt lgkmcnt(0)
s_barrier
s_mov_b32 s45, s46
s_branch LROUND
LEPI:
s_cmp_ge_u32 s36, 13
s_cbranch_scc1 L2end""")
loadB(24)
A(f"""s_lshl_b32 s40, s36, 12
s_add_u32 s40, s40, {ACC}
v_lshlrev_b32 v16, 8, v13
v_lshl_add_u32 v16, v14, 5, v16
v_add_u32 v16, s40, v16""")
for ks in range(2):
    A(f"ds_read_b128 v[84:87], v16 offset:{ks*128}\nds_read_b128 v[88:91], v16 offset:{ks*128+16}\ns_waitcnt lgkmcnt(0)")
    for j in range(4):
        h=72+ks*4+j; l=92+ks*4+j; a=84+2*j
        A(f"""v_cvt_pk_bf16_f32 v{h}, v{a}, v{a+1}
v_lshlrev_b32 v100, 16, v{h}
v_and_b32 v101, 0xffff0000, v{h}
v_sub_f32 v100, v{a}, v100
v_sub_f32 v101, v{a+1}, v101
v_cvt_pk_bf16_f32 v{l}, v100, v101""")
A(f"""s_lshl_b32 s40, s36, 11
s_add_u32 s40, s40, s37
v_lshlrev_b32 v17, 9, v14
v_lshl_add_u32 v17, v13, 1, v17
s_lshl_b32 s41, s36, 4
v_lshl_add_u32 v18, v14, 2, s41
v_cmp_gt_u32 vcc, 196, v18
s_and_saveexec_b64 s[38:39], vcc
s_cbranch_execz L2end""")
for ct in range(4):
    A(f"""v_mfma_f32_16x16x32_bf16 v[104:107], v[72:75], v[{40+ct*8}:{43+ct*8}], 0
v_mfma_f32_16x16x32_bf16 v[104:107], v[76:79], v[{44+ct*8}:{47+ct*8}], v[104:107]
v_mfma_f32_16x16x32_bf16 v[104:107], v[92:95], v[{40+ct*8}:{43+ct*8}], v[104:107]
v_mfma_f32_16x16x32_bf16 v[104:107], v[96:99], v[{44+ct*8}:{47+ct*8}], v[104:107]
s_nop 7
v_cvt_pk_bf16_f32 v104, v104, v105
v_cvt_pk_bf16_f32 v106, v106, v107
buffer_store_short v104, v17, s[28:31], s40 offen offset:{ct*32}
buffer_store_short_d16_hi v104, v17, s[28:31], s40 offen offset:{ct*32+128}
buffer_store_short v106, v17, s[28:31], s40 offen offset:{ct*32+256}
buffer_store_short_d16_hi v106, v17, s[28:31], s40 offen offset:{ct*32+384}""")
A("L2end:\ns_endpgm")
A('.section .rodata,"a"')
for n,v in (("sort_kernel",64),(K+"_kernel",128)):
    A(f""".p2align 6
.amdhsa_kernel {n}
  .amdhsa_next_free_vgpr {v}
  .amdhsa_next_free_sgpr 102
  .amdhsa_accum_offset {v}
  .amdhsa_group_segment_fixed_size 0
  .amdhsa_kernarg_size 64
  .amdhsa_user_sgpr_count 2
  .amdhsa_user_sgpr_kernarg_segment_ptr 1
  .amdhsa_system_sgpr_workgroup_id_x 1
.end_amdhsa_kernel""")
open(f"cdna_kernels/{K}.s","w").write("\n".join(o)+"\n")
```

```python
K='standalone__kernel_systems_refs_featgraph__graph'
o=[]
A=o.append
A(f"; @launch kernel=sort_kernel grid=(256,1,1) block=(256,1,1) lds=16384")
A(f"; @launch kernel={K}_kernel grid=(256,1,1) block=(1024,1,1) lds=129024")
A('.amdgcn_target "amdgcn-amd-amdhsa--gfx950"\n.text')
def srd(d,b,n): A(f"s_mov_b32 s{d}, s{b}\ns_mov_b32 s{d+1}, s{b+1}\ns_mov_b32 s{d+2}, {n}\ns_mov_b32 s{d+3}, 0x20000")
TAB=4<<20
A(".globl sort_kernel\n.p2align 8\n.type sort_kernel,@function\nsort_kernel:")
A("s_cmp_ge_u32 s2, 256\ns_cbranch_scc1 L1end")
A("s_load_dwordx4 s[4:7], s[0:1], 8\ns_load_dwordx2 s[8:9], s[0:1], 56\ns_waitcnt lgkmcnt(0)")
srd(12,4,3200000); srd(16,6,3200000); srd(20,8,TAB+262144)
[A(f"s_mov_b32 s{40+k}, {k*1024}") for k in range(13)]
A("""s_mul_i32 s24, s2, 12500
s_mov_b32 s25, 21913099
s_mov_b32 s26, 196
v_lshlrev_b32 v1, 2, v0
v_mov_b32 v2, 0
ds_write_b32 v1, v2
v_add_u32 v3, s24, v1""")
for k in range(13):
    if k==12: A("v_cmp_gt_u32 vcc, 53, v0\ns_and_saveexec_b64 s[28:29], vcc")
    A(f"buffer_load_dword v{10+k}, v3, s[12:15], s{40+k} offen")
    A(f"buffer_load_dword v{30+k}, v3, s[16:19], s{40+k} offen")
A("s_mov_b64 exec, s[28:29]\ns_waitcnt vmcnt(0) lgkmcnt(0)\ns_barrier\nv_mov_b32 v2, 1")
for k in range(13):
    if k==12: A("s_mov_b64 exec, vcc")
    A(f"""v_mul_hi_u32 v{50+k}, v{30+k}, s25
v_mul_lo_u32 v4, v{50+k}, s26
v_sub_u32 v4, v{30+k}, v4
v_lshl_or_b32 v{10+k}, v4, 16, v{10+k}
v_lshlrev_b32 v{50+k}, 2, v{50+k}
ds_add_rtn_u32 v{30+k}, v{50+k}, v2""")
A("s_mov_b64 exec, s[28:29]\ns_waitcnt lgkmcnt(0)\ns_barrier\nds_read_b32 v5, v1\ns_waitcnt lgkmcnt(0)\nv_mov_b32 v6, v5")
for d in (1,2,4,8,16,32,64,128):
    A(f"""s_barrier
ds_write_b32 v1, v6
s_waitcnt lgkmcnt(0)
s_barrier
v_subrev_u32 v7, {d*4}, v1
v_max_i32 v7, 0, v7
ds_read_b32 v7, v7
v_cmp_le_u32 vcc, {d}, v0
s_waitcnt lgkmcnt(0)
v_cndmask_b32 v7, 0, v7, vcc
v_add_u32 v6, v6, v7""")
A(f"""v_sub_u32 v6, v6, v5
s_barrier
ds_write_b32 v1, v6
v_lshl_or_b32 v7, v5, 16, v6
s_lshl_b32 s27, s2, 2
s_add_u32 s27, s27, {TAB}
v_lshlrev_b32 v8, 10, v0
buffer_store_dword v7, v8, s[20:23], s27 offen
s_waitcnt lgkmcnt(0)
s_barrier
v_cmp_gt_u32 vcc, 53, v0""")
for k in range(13):
    if k==12: A("s_mov_b64 exec, vcc")
    A(f"ds_read_b32 v{50+k}, v{50+k}")
A("s_waitcnt lgkmcnt(0)")
for k in range(13):
    if k==12: A("s_mov_b64 exec, vcc")
    else: A("s_mov_b64 exec, s[28:29]")
    A(f"v_add_u32 v4, v{50+k}, v{30+k}\nv_lshlrev_b32 v4, 2, v4\nds_write_b32 v4, v{10+k} offset:1024")
A("s_mov_b64 exec, s[28:29]\ns_waitcnt lgkmcnt(0)\ns_barrier")
for k in range(13):
    if k==12: A("s_mov_b64 exec, vcc")
    A(f"ds_read_b32 v{10+k}, v1 offset:{1024+k*1024}")
A("s_waitcnt lgkmcnt(0)")
for k in range(13):
    if k==12: A("s_mov_b64 exec, vcc")
    else: A("s_mov_b64 exec, s[28:29]")
    A(f"buffer_store_dword v{10+k}, v3, s[20:23], s{40+k} offen")
A("L1end:\ns_endpgm")
ACC,Q,ED,PRE=75776,49152-12288,8192,0
Q=36864+0
CNT,RK,E2=4096,24576,40960
Q=49152
A(f".globl {K}_kernel\n.p2align 8\n.type {K}_kernel,@function\n{K}_kernel:")
A("s_cmp_ge_u32 s2, 256\ns_cbranch_scc1 L2end")
A("s_load_dwordx2 s[4:5], s[0:1], 0\ns_load_dwordx4 s[8:11], s[0:1], 24\ns_load_dwordx2 s[12:13], s[0:1], 40\ns_load_dwordx2 s[14:15], s[0:1], 56\ns_waitcnt lgkmcnt(0)")
srd(16,4,6400000); srd(20,8,8192); srd(24,10,8192); srd(28,12,6400000); srd(32,14,TAB+262144)
A(f"""v_and_b32 v1, 63, v0
v_lshrrev_b32 v2, 6, v0
s_nop 0
v_readfirstlane_b32 s36, v2
s_mul_i32 s37, s2, {196*128}
v_lshlrev_b32 v3, 4, v0
v_add_u32 v3, {ACC}, v3
v_mov_b32 v4, 0
v_mov_b32 v5, 0
v_mov_b32 v6, 0
v_mov_b32 v7, 0""")
for k in range(4):
    if k==3: A(f"v_cmp_gt_u32 vcc, {(53248-49152)//16}, v0\ns_and_saveexec_b64 s[38:39], vcc")
    A(f"ds_write_b128 v3, v[4:7] offset:{k*16384}")
A("s_mov_b64 exec, s[38:39]")
A(f"""v_cmp_gt_u32 vcc, 256, v0
s_and_saveexec_b64 s[38:39], vcc
s_lshl_b32 s40, s2, 10
s_add_u32 s40, s40, {TAB}
v_lshlrev_b32 v8, 2, v0
buffer_load_dword v9, v8, s[32:35], s40 offen
s_waitcnt vmcnt(0)
v_lshrrev_b32 v10, 16, v9
v_mov_b32 v11, v10
s_mov_b64 exec, s[38:39]""")
for d in (1,2,4,8,16,32,64,128):
    A(f"""s_and_saveexec_b64 s[38:39], vcc
ds_write_b32 v8, v11 offset:{PRE+4}
s_mov_b64 exec, s[38:39]
s_waitcnt lgkmcnt(0)
s_barrier
s_and_saveexec_b64 s[38:39], vcc
v_subrev_u32 v12, {d*4}, v8
v_max_i32 v12, 0, v12
ds_read_b32 v12, v12 offset:{PRE+4}
v_mov_b32 v33, {d}\nv_cmp_le_u32 s[42:43], v33, v0\ns_nop 1
s_waitcnt lgkmcnt(0)
v_cndmask_b32 v12, 0, v12, s[42:43]
v_add_u32 v11, v11, v12
s_mov_b64 exec, s[38:39]
s_barrier""")
A(f"""s_and_saveexec_b64 s[38:39], vcc
ds_write_b32 v8, v11 offset:{PRE+4}
ds_write_b32 v8, v9 offset:{PRE+2048}
s_mov_b64 exec, s[38:39]
v_mov_b32 v12, 0
ds_write_b32 v12, v12 offset:{PRE}
v_and_b32 v13, 15, v1
v_lshrrev_b32 v14, 4, v1
v_lshlrev_b32 v15, 1, v13
v_lshl_add_u32 v15, v14, 10, v15
v_add_u32 v19, 0x1000, v15
s_cmp_ge_u32 s36, 13
s_cbranch_scc1 LQskip""")
def loadB(S):
    for ct in range(4):
        for ks in range(2):
            for j in range(8):
                A(f"buffer_load_ushort v{80+j}, v{15 if ks==0 else 19}, s[{S}:{S+3}], 0 offen offset:{j*128+ct*32}")
            A("s_waitcnt vmcnt(0)")
            for j in range(4):
                A(f"v_lshl_or_b32 v{40+(ct*2+ks)*4+j}, v{81+2*j}, 16, v{80+2*j}")
loadB(20)
A(f"""s_lshl_b32 s40, s36, 11
s_add_u32 s40, s40, s37
v_lshlrev_b32 v16, 7, v13
v_lshl_add_u32 v16, v14, 4, v16
buffer_load_dwordx4 v[72:75], v16, s[16:19], s40 offen
buffer_load_dwordx4 v[76:79], v16, s[16:19], s40 offen offset:64
s_waitcnt vmcnt(0)
s_lshl_b32 s40, s36, 11
v_lshlrev_b32 v17, 9, v14
v_lshl_add_u32 v17, v13, 1, v17
v_add_u32 v17, s40, v17""")
for ct in range(4):
    A(f"""v_mfma_f32_16x16x32_bf16 v[84:87], v[72:75], v[{40+ct*8}:{43+ct*8}], 0
v_mfma_f32_16x16x32_bf16 v[84:87], v[76:79], v[{44+ct*8}:{47+ct*8}], v[84:87]
s_nop 7
v_cvt_pk_bf16_f32 v84, v84, v85
v_cvt_pk_bf16_f32 v86, v86, v87
ds_write_b16 v17, v84 offset:{Q+ct*32}
ds_write_b16_d16_hi v17, v84 offset:{Q+ct*32+128}
ds_write_b16 v17, v86 offset:{Q+ct*32+256}
ds_write_b16_d16_hi v17, v86 offset:{Q+ct*32+384}""")
A(f"""LQskip:
s_waitcnt lgkmcnt(0)
s_barrier
v_mov_b32 v20, {PRE+1024}
ds_read_b32 v20, v20
v_lshrrev_b32 v21, 2, v0
v_lshlrev_b32 v21, 2, v21
ds_read_b32 v22, v21 offset:{PRE}
ds_read_b32 v23, v21 offset:{PRE+4}
ds_read_b32 v24, v21 offset:{PRE+2048}
s_waitcnt lgkmcnt(0)
v_readfirstlane_b32 s44, v20
s_mov_b32 s45, 0
v_and_b32 v24, 0xffff, v24
v_mul_u32_u24 v25, 3125, v21
v_sub_u32 v24, v24, v22
v_lshl_add_u32 v24, v24, 2, v25
v_and_b32 v26, 3, v0
v_add_u32 v26, v26, v22
v_lshrrev_b32 v27, 3, v1
v_and_b32 v28, 7, v1
v_lshlrev_b32 v28, 4, v28
v_lshl_add_u32 v27, s36, 3, v27
s_mov_b32 s48, 0x3e38aa3b
v_lshlrev_b32 v8, 2, v0
v_mov_b32 v34, 1
LROUND:
s_cmp_ge_u32 s45, s44
s_cbranch_scc1 LEPI
s_add_u32 s46, s45, 4096
v_min_u32 v29, s46, v23
v_mov_b32 v12, 0
v_cmp_gt_u32 vcc, 256, v0
s_and_saveexec_b64 s[38:39], vcc
ds_write_b32 v8, v12 offset:{CNT}
s_mov_b64 exec, s[38:39]
s_waitcnt lgkmcnt(0)
s_barrier
LCOPY:
v_cmp_lt_u32 vcc, v26, v29
s_and_saveexec_b64 s[38:39], vcc
s_cbranch_execz LCDONE
v_lshl_add_u32 v30, v26, 2, v24
buffer_load_dword v31, v30, s[32:35], 0 offen
v_subrev_u32 v32, s45, v26
v_lshlrev_b32 v32, 2, v32
v_add_u32 v26, 4, v26
s_waitcnt vmcnt(0)
v_lshrrev_b32 v33, 14, v31
v_and_b32 v33, 0x3fc, v33
ds_add_rtn_u32 v33, v33, v34 offset:{CNT}
ds_write_b32 v32, v31 offset:{ED}
s_waitcnt lgkmcnt(0)
ds_write_b32 v32, v33 offset:{RK}
s_mov_b64 exec, s[38:39]
s_branch LCOPY
LCDONE:
s_mov_b64 exec, s[38:39]
s_waitcnt lgkmcnt(0)
s_barrier
s_min_u32 s47, s46, s44
s_sub_u32 s47, s47, s45
v_cmp_gt_u32 vcc, 256, v0
s_and_saveexec_b64 s[38:39], vcc
ds_read_b32 v11, v8 offset:{CNT}
s_mov_b64 exec, s[38:39]
s_waitcnt lgkmcnt(0)""")
for d in (1,2,4,8,16,32,64,128):
    A(f"""s_barrier
s_and_saveexec_b64 s[38:39], vcc
ds_write_b32 v8, v11 offset:{CNT+4}
s_mov_b64 exec, s[38:39]
s_waitcnt lgkmcnt(0)
s_barrier
s_and_saveexec_b64 s[38:39], vcc
v_subrev_u32 v12, {d*4}, v8
v_max_i32 v12, 0, v12
ds_read_b32 v12, v12 offset:{CNT+4}
v_mov_b32 v33, {d}
v_cmp_le_u32 s[42:43], v33, v0
s_waitcnt lgkmcnt(0)
s_nop 1
v_cndmask_b32 v12, 0, v12, s[42:43]
v_add_u32 v11, v11, v12
s_mov_b64 exec, s[38:39]""")
A(f"""s_barrier
s_and_saveexec_b64 s[38:39], vcc
ds_write_b32 v8, v11 offset:{CNT+4}
s_mov_b64 exec, s[38:39]
v_mov_b32 v12, 0
ds_write_b32 v12, v12 offset:{CNT}
s_waitcnt lgkmcnt(0)
s_barrier
v_mov_b32 v35, v0
LSC:
v_cmp_gt_u32 vcc, s47, v35
s_and_saveexec_b64 s[38:39], vcc
s_cbranch_execz LSCD
v_lshlrev_b32 v32, 2, v35
ds_read_b32 v31, v32 offset:{ED}
ds_read_b32 v33, v32 offset:{RK}
v_add_u32 v35, 0x400, v35
s_waitcnt lgkmcnt(1)
v_lshrrev_b32 v32, 14, v31
v_and_b32 v32, 0x3fc, v32
ds_read_b32 v32, v32 offset:{CNT}
s_waitcnt lgkmcnt(0)
v_add_u32 v32, v32, v33
v_lshlrev_b32 v32, 1, v32
ds_write_b16 v32, v31 offset:{E2}
s_mov_b64 exec, s[38:39]
s_branch LSC
LSCD:
s_mov_b64 exec, s[38:39]
s_waitcnt lgkmcnt(0)
s_barrier
v_mov_b32 v36, v27
LNODE:
v_lshlrev_b32 v37, 2, v36
ds_read_b32 v38, v37 offset:{CNT}
ds_read_b32 v39, v37 offset:{CNT+4}
v_lshl_add_u32 v37, v36, 7, v28
ds_read_b128 v[60:63], v37 offset:{Q}""")
for j in range(8): A(f"v_mov_b32 v{64+j}, 0")
A("""s_waitcnt lgkmcnt(0)
LEDGE:
v_cmp_lt_u32 vcc, v38, v39
s_cbranch_vccz LEDONE""")
U=4
for u in range(U):
    A(f"""v_add_u32 v{100+u}, {u}, v38
v_cmp_lt_u32 s[{50+2*u}:{51+2*u}], v{100+u}, v39
v_lshlrev_b32 v{100+u}, 1, v{100+u}
ds_read_u16 v{100+u}, v{100+u} offset:{E2}""")
A(f"v_add_u32 v38, {U}, v38\ns_waitcnt lgkmcnt(0)")
for u in range(U):
    A(f"""v_cndmask_b32 v{100+u}, 0, v{100+u}, s[{50+2*u}:{51+2*u}]
v_lshl_add_u32 v{104+u}, v{100+u}, 7, v28
buffer_load_dwordx4 v[{40+4*u}:{43+4*u}], v{104+u}, s[16:19], 0 offen""")
for u in range(U):
    x=40+4*u;z=112+u
    A(f"s_waitcnt vmcnt({U-1-u})\nv_mov_b32 v{z}, 0")
    for j in range(4): A(f"v_dot2_f32_bf16 v{z}, v{x+j}, v{60+j}, v{z}")
    A(f"""s_nop 3
v_add_f32_dpp v{z}, v{z}, v{z} quad_perm:[1,0,3,2] row_mask:0xf bank_mask:0xf
s_nop 1
v_add_f32_dpp v{z}, v{z}, v{z} quad_perm:[2,3,0,1] row_mask:0xf bank_mask:0xf
s_nop 1
v_add_f32_dpp v{z}, v{z}, v{z} row_half_mirror row_mask:0xf bank_mask:0xf
v_mul_f32 v{z}, s48, v{z}
v_sub_f32 v{z}, 0, v{z}
v_exp_f32 v{z}, v{z}
s_nop 0
v_add_f32 v{z}, 1.0, v{z}
v_rcp_f32 v{z}, v{z}
s_nop 0
v_cndmask_b32 v{z}, 0, v{z}, s[{50+2*u}:{51+2*u}]""")
    for j in range(4):
        A(f"""v_lshlrev_b32 v116, 16, v{x+j}
v_and_b32 v117, 0xffff0000, v{x+j}
v_fmac_f32 v{64+2*j}, v116, v{z}
v_fmac_f32 v{65+2*j}, v117, v{z}""")
A(f"""s_branch LEDGE
LEDONE:
v_lshlrev_b32 v37, 1, v37
v_add_u32 v37, {ACC}, v37
ds_read_b128 v[40:43], v37
ds_read_b128 v[44:47], v37 offset:16
s_waitcnt lgkmcnt(0)""")
for j in range(8): A(f"v_add_f32 v{64+j}, v{64+j}, v{40+j}")
A(f"""ds_write_b128 v37, v[64:67]
ds_write_b128 v37, v[68:71] offset:16
v_add_u32 v36, 0x80, v36
v_cmp_gt_u32 vcc, 196, v36
s_and_saveexec_b64 s[38:39], vcc
s_cbranch_execz LMDONE
s_branch LNODE
LMDONE:
s_mov_b64 exec, -1
s_waitcnt lgkmcnt(0)
s_barrier
s_mov_b32 s45, s46
s_branch LROUND
LEPI:
s_cmp_ge_u32 s36, 13
s_cbranch_scc1 L2end""")
loadB(24)
A(f"""s_lshl_b32 s40, s36, 12
s_add_u32 s40, s40, {ACC}
v_lshlrev_b32 v16, 8, v13
v_lshl_add_u32 v16, v14, 5, v16
v_add_u32 v16, s40, v16""")
for ks in range(2):
    A(f"ds_read_b128 v[84:87], v16 offset:{ks*128}\nds_read_b128 v[88:91], v16 offset:{ks*128+16}\ns_waitcnt lgkmcnt(0)")
    for j in range(4):
        h=72+ks*4+j; l=92+ks*4+j; a=84+2*j
        A(f"""v_cvt_pk_bf16_f32 v{h}, v{a}, v{a+1}
v_lshlrev_b32 v100, 16, v{h}
v_and_b32 v101, 0xffff0000, v{h}
v_sub_f32 v100, v{a}, v100
v_sub_f32 v101, v{a+1}, v101
v_cvt_pk_bf16_f32 v{l}, v100, v101""")
A(f"""s_lshl_b32 s40, s36, 11
s_add_u32 s40, s40, s37
v_lshlrev_b32 v17, 9, v14
v_lshl_add_u32 v17, v13, 1, v17
s_lshl_b32 s41, s36, 4
v_lshl_add_u32 v18, v14, 2, s41
v_cmp_gt_u32 vcc, 196, v18
s_and_saveexec_b64 s[38:39], vcc
s_cbranch_execz L2end""")
for ct in range(4):
    A(f"""v_mfma_f32_16x16x32_bf16 v[104:107], v[72:75], v[{40+ct*8}:{43+ct*8}], 0
v_mfma_f32_16x16x32_bf16 v[104:107], v[76:79], v[{44+ct*8}:{47+ct*8}], v[104:107]
v_mfma_f32_16x16x32_bf16 v[104:107], v[92:95], v[{40+ct*8}:{43+ct*8}], v[104:107]
v_mfma_f32_16x16x32_bf16 v[104:107], v[96:99], v[{44+ct*8}:{47+ct*8}], v[104:107]
s_nop 7
v_cvt_pk_bf16_f32 v104, v104, v105
v_cvt_pk_bf16_f32 v106, v106, v107
buffer_store_short v104, v17, s[28:31], s40 offen offset:{ct*32}
buffer_store_short_d16_hi v104, v17, s[28:31], s40 offen offset:{ct*32+128}
buffer_store_short v106, v17, s[28:31], s40 offen offset:{ct*32+256}
buffer_store_short_d16_hi v106, v17, s[28:31], s40 offen offset:{ct*32+384}""")
A("L2end:\ns_endpgm")
A('.section .rodata,"a"')
for n,v in (("sort_kernel",64),(K+"_kernel",128)):
    A(f""".p2align 6
.amdhsa_kernel {n}
  .amdhsa_next_free_vgpr {v}
  .amdhsa_next_free_sgpr 102
  .amdhsa_accum_offset {v}
  .amdhsa_group_segment_fixed_size 0
  .amdhsa_kernarg_size 64
  .amdhsa_user_sgpr_count 2
  .amdhsa_user_sgpr_kernarg_segment_ptr 1
  .amdhsa_system_sgpr_workgroup_id_x 1
.end_amdhsa_kernel""")
open(f"cdna_kernels/{K}.s","w").write("\n".join(o)+"\n")
```
